```python
import torch

def _softmax(x, axis=-1):
    return torch.softmax(x, dim=axis)
def _gelu(x):
    return torch.nn.functional.gelu(x, approximate="tanh")
def _silu(x):
    return torch.nn.functional.silu(x)
def _sigmoid(x):
    return torch.sigmoid(x)
def _layernorm(x, axis=-1, eps=1e-5):
    m = x.mean(dim=axis, keepdim=True)
    v = x.var(dim=axis, keepdim=True, unbiased=False)
    return (x - m) / torch.sqrt(v + eps)
def _scatter_add(tgt, idx, src, axis=0):
    return tgt.clone().index_add_(axis, idx, src)
def _segment_sum(src, seg, n):
    out = torch.zeros((n,) + src.shape[1:], dtype=src.dtype)
    return out.index_add_(0, seg, src)
def _pad(x, pw):
    flat = tuple(v for pair in reversed(pw) for v in pair)
    return torch.nn.functional.pad(x, flat)

kernel_name = 'recurrent_scan__grouped_kv_mqa__glu_gated_swiglu__prompt'

def setup_inputs():

    _w = (lambda a: (lambda t: t.to(torch.bfloat16) if t.is_floating_point() else t)(torch.as_tensor(a)))
    def _A_setup():
        B, S, D, H = 1, 2048, 512, 32
        Dh = D // H
        return {
            "x": _w((lambda *s: torch.randn(*s, dtype=torch.bfloat16) * 0.05)(B, S, D)),
            "wq": _w((lambda *s: torch.randn(*s, dtype=torch.bfloat16) * 0.2)(D, H * Dh)),
            "wk": _w((lambda *s: torch.randn(*s, dtype=torch.bfloat16) * 0.2)(D, Dh)),
            "wv": _w((lambda *s: torch.randn(*s, dtype=torch.bfloat16) * 0.2)(D, Dh)),
            "wo": _w((lambda *s: torch.randn(*s, dtype=torch.bfloat16) * 0.2)(H * Dh, D)),
        }
    _A_in = _A_setup()

    def _B_setup():
        B, S, D, F = 1, 2048, 512, 1376
        return {
            "x": _w((lambda *s: torch.randn(*s, dtype=torch.bfloat16) * 0.05)(B, S, D)),
            "w1": _w((lambda *s: torch.randn(*s, dtype=torch.bfloat16) * 0.1)(D, F) * (2.0 / D) ** 0.5),
            "w3": _w((lambda *s: torch.randn(*s, dtype=torch.bfloat16) * 0.1)(D, F) * (2.0 / D) ** 0.5),
            "w2": _w((lambda *s: torch.randn(*s, dtype=torch.bfloat16) * 0.1)(F, D) * (2.0 / F) ** 0.5),
        }
    _B_in = _B_setup()

    return {
        "A_x": _A_in["x"],
        "A_wq": _A_in["wq"],
        "A_wk": _A_in["wk"],
        "A_wv": _A_in["wv"],
        "A_wo": _A_in["wo"],
        "B_x": _B_in["x"],
        "B_w1": _B_in["w1"],
        "B_w3": _B_in["w3"],
        "B_w2": _B_in["w2"],
    }

def reference(A_x, A_wq, A_wk, A_wv, A_wo, B_x, B_w1, B_w3, B_w2):
    def _A_ref(x, wq, wk, wv, wo):
        B, S, D = x.shape
        H = 32
        Dh = D // H
        q = (lambda x, *d: x.permute(*d))((x @ wq).reshape(B, S, H, Dh), 0, 2, 1, 3)
        k = x @ wk
        v = x @ wv
        scores = torch.einsum("bhqd,bkd->bhqk", q, k) * (Dh ** -0.5)
        p = _softmax(scores, axis=-1)
        o = torch.einsum("bhqk,bkd->bhqd", p, v)
        return (lambda x, *d: x.permute(*d))(o, 0, 2, 1, 3).reshape(B, S, H * Dh) @ wo

    def _B_ref(x, w1, w3, w2):
        gate = torch.einsum("bsd,df->bsf", x, w1)
        up = torch.einsum("bsd,df->bsf", x, w3)
        h = _silu(gate) * up
        out = torch.einsum("bsf,fd->bsd", h, w2)
        return out

    x = A_x
    xn = _layernorm(x, axis=-1)
    s = _A_ref(xn, A_wq, A_wk, A_wv, A_wo)
    g = _silu(_B_ref(xn, B_w1, B_w3, B_w2))
    return x + s * g
```

```python
import re
from collections import defaultdict

REG_RE = re.compile(r'^(-|\|)?(abs\()?([vsa])(\d+)\)?\|?$')
RNG_RE = re.compile(r'^(-)?([vsa])\[(\d+):(\d+)\]$')

def regs_of(tok):
    tok = tok.strip()
    m = RNG_RE.match(tok)
    if m:
        k = m.group(2); return {(k, i) for i in range(int(m.group(3)), int(m.group(4)) + 1)}
    m = REG_RE.match(tok)
    if m:
        return {(m.group(3), int(m.group(4)))}
    if tok == 'vcc': return {('vcc', 0)}
    if tok in ('vcc_lo', 'vcc_hi'): return {('vcc', 0)}
    if tok == 'exec' or tok in ('exec_lo', 'exec_hi'): return {('exec', 0)}
    if tok == 'm0': return {('m0', 0)}
    return set()

def split_ops(s):
    out = []; depth = 0; cur = ''
    for ch in s:
        if ch == '[' or ch == '(': depth += 1
        if ch == ']' or ch == ')': depth -= 1
        if ch == ',' and depth == 0:
            out.append(cur.strip()); cur = ''
        else:
            cur += ch
    if cur.strip(): out.append(cur.strip())
    return out

TRANS = ('v_exp_f32', 'v_log_f32', 'v_rcp_f32', 'v_rsq_f32', 'v_sqrt_f32', 'v_sin_f32', 'v_cos_f32', 'v_exp_f16', 'v_rcp_iflag_f32')
NO_DST_SALU = ('s_cmp', 's_waitcnt', 's_barrier', 's_nop', 's_branch', 's_cbranch', 's_setprio', 's_endpgm', 's_sleep', 's_bitcmp', 's_sethalt', 's_setreg')
SCC_WRITERS = ('s_add_', 's_addc', 's_sub_', 's_subb', 's_and_', 's_or_', 's_xor_', 's_lshl', 's_lshr', 's_ashr', 's_cmp', 's_min', 's_max', 's_bfe', 's_andn2', 's_orn2', 's_not', 's_addk', 's_bitcmp', 's_mul_hi' )

class Ins:
    __slots__ = ('text', 'op', 'ops', 'mods', 'w', 'r', 'kind', 'target', 'tags_w', 'tags_r', 'passes', 'srcC', 'comment', 'vmq', 'lgq', 'smem', 'wide_store_data', 'dpp', 'auto')
    def __init__(self, text, tags_w=(), tags_r=()):
        self.text = text.strip(); self.auto = False
        self.tags_w = set(tags_w); self.tags_r = set(tags_r)
        t = self.text
        sp = t.split(None, 1)
        self.op = sp[0]
        rest = sp[1] if len(sp) > 1 else ''
        ops = split_ops(rest)
        self.mods = ''
        if ops:
            last = ops[-1].split(None, 1)
            if len(last) > 1 and not last[0].endswith(':'):
                ops[-1] = last[0]; self.mods = last[1]
        self.ops = ops
        self.w = set(); self.r = set(); self.target = None; self.passes = 0; self.srcC = set()
        self.vmq = False; self.lgq = False; self.smem = False; self.wide_store_data = set(); self.dpp = False
        op = self.op
        R = lambda i: regs_of(ops[i]) if i < len(ops) else set()
        if op == 'PSEUDO_WAIT':
            self.kind = 'pseudo'; return
        if op.startswith('v_mfma') or op.startswith('v_smfmac'):
            self.kind = 'mfma'
            self.w = R(0); self.r = R(1) | R(2) | R(3); self.srcC = R(3)
            self.passes = 8 if '32x32' in op else 4
            if op.startswith('v_smfmac'):
                self.r |= R(0); self.srcC = R(0)
        elif op.startswith('v_'):
            self.kind = 'trans' if op.replace('_e32', '').replace('_e64', '') in TRANS else 'valu'
            if op.startswith('v_cmp'):
                self.w = R(0); self.r = R(1) | R(2)
                if op.startswith('v_cmpx'): self.w |= {('exec', 0)}
            elif op.startswith('v_permlane32_swap') or op.startswith('v_permlane16_swap'):
                self.w = R(0) | R(1); self.r = R(0) | R(1)
            elif op.startswith('v_add_co') or op.startswith('v_sub_co') or op.startswith('v_subrev_co'):
                self.w = R(0) | R(1); self.r = R(2) | R(3)
            elif op.startswith('v_addc_co') or op.startswith('v_subb_co'):
                self.w = R(0) | R(1); self.r = R(2) | R(3) | R(4)
            elif op.startswith('v_div_scale'):
                self.w = R(0) | R(1); self.r = R(2) | R(3) | R(4)
            else:
                self.w = R(0)
                for i in range(1, len(ops)): self.r |= R(i)
                if op.startswith(('v_fmac', 'v_dot2c', 'v_mac', 'v_pk_fmac')) or 'UNUSED_PRESERVE' in self.mods or op.startswith('v_writelane') or op.startswith('v_fma_mixhi') or op.startswith('v_fma_mixlo'):
                    self.r |= R(0)
                if op.startswith('v_div_fmas'): self.r |= {('vcc', 0)}
                if op.startswith('v_cndmask') and len(ops) == 3: self.r |= {('vcc', 0)}
            if 'row_' in self.mods or 'quad_perm' in self.mods or 'wave_' in self.mods or 'bcast' in self.mods or '_dpp' in op:
                self.dpp = True
                self.r |= R(0)
            self.r |= {('exec', 0)}
        elif op.startswith('ds_'):
            self.kind = 'ds'; self.lgq = True
            if op.startswith(('ds_read', 'ds_bpermute', 'ds_permute', 'ds_swizzle')) or '_rtn' in op:
                self.w = R(0)
                for i in range(1, len(ops)): self.r |= R(i)
            else:
                for i in range(len(ops)): self.r |= R(i)
            self.r |= {('exec', 0)}
        elif op.startswith('buffer_'):
            self.kind = 'vmem'; self.vmq = True
            mods = self.mods.split()
            if op.startswith('buffer_wbl2') or op.startswith('buffer_inv'):
                pass
            elif 'lds' in mods:
                for i in range(len(ops)): self.r |= R(i)
                self.r |= {('m0', 0)}
            elif op.startswith('buffer_load'):
                self.w = R(0)
                for i in range(1, len(ops)): self.r |= R(i)
            elif op.startswith('buffer_store'):
                for i in range(len(ops)): self.r |= R(i)
                if 'x3' in op or 'x4' in op: self.wide_store_data = R(0)
            elif op.startswith('buffer_atomic'):
                for i in range(len(ops)): self.r |= R(i)
                if 'sc0' in mods: self.w = R(0)
            self.r |= {('exec', 0)}
        elif op.startswith('global_'):
            self.kind = 'vmem'; self.vmq = True
            mods = self.mods.split()
            if op.startswith('global_load_lds'):
                for i in range(len(ops)): self.r |= R(i)
                self.r |= {('m0', 0)}
            elif op.startswith('global_load'):
                self.w = R(0)
                for i in range(1, len(ops)): self.r |= R(i)
            elif op.startswith('global_store'):
                for i in range(len(ops)): self.r |= R(i)
                if 'x3' in op or 'x4' in op: self.wide_store_data = R(1)
            elif op.startswith('global_atomic'):
                if 'sc0' in mods:
                    self.w = R(0)
                    for i in range(1, len(ops)): self.r |= R(i)
                else:
                    for i in range(len(ops)): self.r |= R(i)
            self.r |= {('exec', 0)}
        elif op.startswith('s_load') or op.startswith('s_buffer_load') or op.startswith('s_memtime') or op.startswith('s_memrealtime'):
            self.kind = 'smem'; self.lgq = True; self.smem = True
            self.w = R(0)
            for i in range(1, len(ops)): self.r |= R(i)
        elif op.startswith('s_'):
            self.kind = 'salu'
            if op.startswith('s_cbranch') or op == 's_branch':
                self.kind = 'branch'; self.target = ops[0]
                if 'scc' in op: self.r |= {('scc', 0)}
                if 'vcc' in op: self.r |= {('vcc', 0)}
                if 'exec' in op: self.r |= {('exec', 0)}
            elif op.startswith(NO_DST_SALU):
                for i in range(len(ops)): self.r |= R(i)
            else:
                self.w = R(0)
                for i in range(1, len(ops)): self.r |= R(i)
                if 'saveexec' in op:
                    self.w |= {('exec', 0)}; self.r |= {('exec', 0)}
                if op.startswith(('s_addk', 's_mulk')): self.r |= R(0)
                if op.startswith(('s_cselect', 's_addc', 's_subb', 's_cmov')): self.r |= {('scc', 0)}
            if op.startswith(SCC_WRITERS) or 'saveexec' in op: self.w |= {('scc', 0)}
        else:
            raise ValueError('unknown op ' + text)

class Label:
    def __init__(self, name): self.name = name

class Raw:
    def __init__(self, text): self.text = text

class Prog:
    def __init__(self, name):
        self.name = name; self.items = []
    def I(self, text, tw=(), tr=()):
        for line in text.strip().split('\n'):
            line = line.split(';')[0].strip()
            if not line: continue
            if line.endswith(':'):
                self.items.append(Label(line[:-1])); continue
            self.items.append(Ins(line, tw, tr))
        return self
    def wait_tags(self, *tags):
        self.items.append(Ins('PSEUDO_WAIT', (), tags)); return self
    def L(self, name): self.items.append(Label(name)); return self
    def raw(self, t): self.items.append(Raw(t)); return self
    def extend(self, items): self.items.extend(items)

    def _succ(self):
        items = self.items; lab = {it.name: i for i, it in enumerate(items) if isinstance(it, Label)}
        succ = []
        for i, it in enumerate(items):
            s = []
            if isinstance(it, Ins) and it.kind == 'branch':
                s.append(lab[it.target])
                if it.op != 's_branch': s.append(i + 1)
            elif isinstance(it, Ins) and it.op == 's_endpgm':
                pass
            else:
                s.append(i + 1)
            succ.append([x for x in s if x < len(items)])
        return succ

    def insert_waits(self, verbose=False):
        items = self.items
        succ = self._succ()
        n = len(items)
        def merge(a, b):
            if a is None: return dict(b)
            out = dict(a)
            for k, (q, c) in b.items():
                if k in out:
                    q0, c0 = out[k]
                    if q0 != q:
                        out[k + ('alt',)] = (q, c)
                    else:
                        out[k] = (q, min(c, c0))
                else: out[k] = (q, c)
            return out
        def parse_wait(it):
            vm = lg = None
            m = re.search(r'vmcnt\((\d+)\)', it.text); vm = int(m.group(1)) if m else None
            m = re.search(r'lgkmcnt\((\d+)\)', it.text); lg = int(m.group(1)) if m else None
            return vm, lg
        def apply_wait(st, vm, lg):
            has_sm = any(q == 'sm' for q, c in st.values())
            out = {}
            for k, (q, c) in st.items():
                if q == 'vm' and vm is not None and c >= vm: continue
                if q == 'lg' and lg is not None and (lg == 0 or (c >= lg and not has_sm)): continue
                if q == 'sm' and lg == 0: continue
                out[k] = (q, c)
            return out
        def need(st, it):
            vm = lg = None
            keys = set()
            if isinstance(it, Ins):
                keys = {k for k in (it.r | it.w)} | {('tag', t) for t in it.tags_r}
            has_sm = any(q == 'sm' for q, c in st.values())
            for k, (q, c) in st.items():
                kk = k[:2]
                if kk in keys:
                    if q == 'vm': vm = c if vm is None else min(vm, c)
                    elif q == 'lg':
                        cc = 0 if has_sm else c
                        lg = cc if lg is None else min(lg, cc)
                    else: lg = 0
            if vm is not None: vm = min(vm, 63)
            if lg is not None: lg = min(lg, 15)
            return vm, lg
        def transfer(st, it, req):
            if not isinstance(it, Ins): return st
            vm, lg = req
            if vm is not None or lg is not None: st = apply_wait(st, vm, lg)
            if it.op == 's_waitcnt':
                v, l = parse_wait(it); st = apply_wait(st, v, l)
            if it.op == 's_endpgm': return {}
            if it.vmq or it.lgq:
                q = 'vm' if it.vmq else 'lg'
                st = {k: ((qq, c + 1) if (qq == q) else (qq, c)) for k, (qq, c) in st.items()}
                tagq = 'vm' if it.vmq else ('sm' if it.smem else 'lg')
                for r in it.w: st[r] = (tagq, 0)
                for t in it.tags_w: st[('tag', t)] = (tagq, 0)
            return st
        instate = [None] * n; instate[0] = {}
        reqs = [(None, None)] * n
        changed = True; iters = 0
        while changed:
            changed = False; iters += 1
            if iters > 200: raise RuntimeError('wait dataflow did not converge')
            for i in range(n):
                st = instate[i]
                if st is None: continue
                rq = need(st, items[i])
                o = reqs[i]
                rq = tuple((a if b is None else (b if a is None else min(a, b))) for a, b in zip(rq, o))
                if rq != reqs[i]: reqs[i] = rq; changed = True
                out = transfer(dict(st), items[i], rq)
                for s in succ[i]:
                    m = merge(instate[s], out)
                    if m != instate[s]: instate[s] = m; changed = True
        new = []
        for i, it in enumerate(items):
            vm, lg = reqs[i]
            if vm is not None or lg is not None:
                parts = []
                if vm is not None: parts.append(f'vmcnt({vm})')
                if lg is not None: parts.append(f'lgkmcnt({lg})')
                w = Ins('s_waitcnt ' + ' '.join(parts)); w.auto = True
                new.append(w)
            if isinstance(it, Ins) and it.kind == 'pseudo': continue
            new.append(it)
        self.items = new

    def insert_nops(self):
        for _ in range(50):
            items = self.items
            succ = self._succ()
            pred = defaultdict(list)
            for i, ss in enumerate(succ):
                for s in ss: pred[s].append(i)
            def states(it):
                if not isinstance(it, Ins): return 0
                if it.op == 's_nop': return int(it.ops[0], 0) + 1
                return 1
            def required(p, c):
                need = 0
                pw = p.w;
                vw = {x for x in pw if x[0] in ('v', 'a')}
                sw = {x for x in pw if x[0] in ('s', 'vcc')}
                cvalu = c.kind in ('valu', 'trans')
                if p.kind in ('valu', 'trans'):
                    if c.kind == 'mfma' and vw & c.r: need = max(need, 2)
                    if p.kind == 'trans' and c.kind in ('valu',) and vw & c.r: need = max(need, 1)
                    if p.kind == 'trans' and c.kind == 'mfma' and vw & c.r: need = max(need, 2)
                    if cvalu and sw & c.r:
                        need = max(need, 4 if c.op.startswith(('v_readlane', 'v_writelane')) and (sw & regs_of(c.ops[2])) else 2)
                        if c.op.startswith('v_div_fmas'): need = max(need, 4)
                    if c.kind == 'vmem' and sw & c.r: need = max(need, 5)
                    if c.op.startswith(('v_readlane', 'v_readfirstlane')) and vw & c.r: need = max(need, 1)
                    if c.op.startswith('v_permlane') and vw & c.r: need = max(need, 2)
                    if c.dpp and vw & c.r: need = max(need, 2)
                    if p.op.startswith('v_dot') and cvalu and (vw & (c.r | c.w)):
                        if not (c.op == p.op and not (vw & (regs_of(c.ops[1]) | regs_of(c.ops[2])))): need = max(need, 3)
                    if p.op.startswith('v_dot') and c.kind in ('vmem', 'ds', 'mfma') and (vw & c.r): need = max(need, 3)
                    if ('sdwa' in p.op or 'op_sel' in p.mods) and cvalu and vw & (c.r | c.w): need = max(need, 1)
                    if ('exec', 0) in p.w and (cvalu or c.kind == 'mfma'): need = max(need, 5)
                if p.kind == 'mfma':
                    big = p.passes == 8
                    if c.kind == 'mfma':
                        ab = regs_of(c.ops[1]) | regs_of(c.ops[2])
                        if vw & ab: need = max(need, 12 if big else 8)
                        if vw & c.srcC:
                            same = (c.srcC == vw and c.passes == p.passes)
                            if not same: need = max(need, 10 if big else 6)
                    elif cvalu:
                        if vw & (c.r | c.w): need = max(need, 12 if big else 8)
                        if p.srcC & c.w: need = max(need, 7 if big else 3)
                    elif c.kind in ('vmem', 'ds'):
                        if vw & (c.r | c.w): need = max(need, 12 if big else 8)
                if p.kind == 'salu' and ('m0', 0) in p.w and c.kind == 'vmem' and ('m0', 0) in c.r: need = max(need, 1)
                if p.kind == 'vmem' and p.wide_store_data:
                    if cvalu and p.wide_store_data & c.w: need = max(need, 2)
                    elif p.wide_store_data & c.w: need = max(need, 1)
                return need
            fixes = {}
            for i, c in enumerate(items):
                if not isinstance(c, Ins) or c.kind in ('pseudo',): continue
                stack = [(p, 0) for p in pred[i]]; seen = {}
                worst = 0
                while stack:
                    j, d = stack.pop()
                    if j in seen and seen[j] <= d: continue
                    seen[j] = d
                    p = items[j]
                    if isinstance(p, Ins):
                        rq = required(p, c)
                        if rq > d: worst = max(worst, rq - d)
                    nd = d + states(p)
                    if nd < 12:
                        for q in pred[j]: stack.append((q, nd))
                if worst: fixes[i] = worst
            if not fixes: return
            new = []
            for i, it in enumerate(items):
                if i in fixes:
                    k = fixes[i]
                    while k > 0:
                        m = min(k, 16); w = Ins(f's_nop {m-1}'); w.auto = True; new.append(w); k -= m
                new.append(it)
            self.items = new
        raise RuntimeError('nop insertion did not converge')

    def finalize(self):
        self.insert_waits(); self.insert_nops()
    def text(self):
        out = []
        for it in self.items:
            if isinstance(it, Label): out.append(it.name + ':')
            elif isinstance(it, Raw): out.append(it.text)
            else: out.append('  ' + it.text + ('   ; auto' if it.auto else ''))
        return '\n'.join(out) + '\n'
    def count(self):
        c = defaultdict(int)
        for it in self.items:
            if isinstance(it, Ins): c[it.kind] += 1;
        return dict(c)

def vr(a, n=1): return f'v{a}' if n == 1 else f'v[{a}:{a+n-1}]'
def sr(a, n=1): return f's{a}' if n == 1 else f's[{a}:{a+n-1}]'

def kernel_text(name, prog, vgpr, sgpr=102, accum=None):
    if accum is None: accum = (vgpr + 3) // 4 * 4
    return f""".globl {name}
.p2align 8
.type {name},@function
{name}:
{prog.text()}"""

def descriptor(name, vgpr, sgpr=102, accum=None):
    if accum is None: accum = min(256, (vgpr + 3) // 4 * 4)
    return f""".amdhsa_kernel {name}
  .amdhsa_next_free_vgpr {vgpr}
  .amdhsa_next_free_sgpr {sgpr}
  .amdhsa_accum_offset {accum}
  .amdhsa_group_segment_fixed_size 0
  .amdhsa_kernarg_size 96
  .amdhsa_user_sgpr_count 2
  .amdhsa_user_sgpr_kernarg_segment_ptr 1
  .amdhsa_system_sgpr_workgroup_id_x 1
  .amdhsa_float_denorm_mode_32 3
.end_amdhsa_kernel
"""
```

```python
from asmlib import *
XF = 0x000000
QF = 0x200000
KVF= 0x400000
HF = 0x500000
OF = 0xB00000
GF = 0xD00000
WS_USED = 0xF00000
KARG = dict(x=0, wq=8, wk=16, wv=24, wo=32, bx=40, w1=48, w3=56, w2=64, out=72, dbg=80, ws=88)

def srd(p, dst, ptr, nbytes):
    p.I(f"""
    s_mov_b32 s{dst}, s{ptr}
    s_and_b32 s{dst+1}, s{ptr+1}, 0xffff
    s_mov_b32 s{dst+2}, {hex(nbytes)}
    s_mov_b32 s{dst+3}, 0x00020000
    """)

def decode_wg(p, s_tb, s_cb, endlabel):
    p.I(f"""
    s_cmp_ge_u32 s2, 256
    s_cbranch_scc1 {endlabel}
    s_and_b32 s{s_tb}, s2, 7
    s_lshr_b32 s{s_cb}, s2, 3
    s_and_b32 s{s_cb}, s{s_cb}, 3
    s_lshl_b32 s{s_cb}, s{s_cb}, 3
    s_add_u32 s{s_tb}, s{s_tb}, s{s_cb}
    s_lshr_b32 s{s_cb}, s2, 5
    """)

STAMP = 0xF00000
import os
DO_STAMP = os.environ.get('STAMP', '0') == '1'
ST_BASE = 84
class Stamper:
    def __init__(self, p, kidx): self.p = p; self.k = kidx; self.n = 0
    def stamp(self, real=False):
        if not DO_STAMP: return
        assert self.n < 14
        op = 's_memrealtime' if real else 's_memtime'
        self.p.I(f"{op} s[100:101]\ns_waitcnt lgkmcnt(0)\ns_mov_b32 s{ST_BASE+self.n}, s100")
        self.n += 1
    def flush(self, s_w, srd_base, lane_reg_is_lane='v0', tmp=(120, 121)):
        if not DO_STAMP: return
        p = self.p; a, b = tmp
        p.I(f"""
        s_lshl_b32 s100, s2, 3
        s_add_u32 s100, s100, s{s_w}
        s_lshl_b32 s100, s100, 6
        s_add_u32 s100, s100, {STAMP + self.k * 131072}
        v_mov_b32 v{a}, 0
        """)
        for i in range(self.n):
            p.I(f"v_mov_b32 v{b}, s{ST_BASE+i}\nbuffer_store_dword v{b}, v{a}, s[{srd_base}:{srd_base+3}], s100 offen offset:{4*i}")
WS_USED = 0x1000000
```

```python
from common import *
L_XN = 0; L_WQ = 65536; L_WKV = 131072; K1_LDS = 147456
QSCALE = 0x3eb8aa3b
def build_k1():
    p = Prog('k1')
    S_W, S_TB, S_CB = 32, 33, 34
    X = 16
    p.I(f"""
    s_load_dwordx2 s[4:5], s[0:1], {KARG['x']}
    s_load_dwordx4 s[8:11], s[0:1], {KARG['wq']}
    s_load_dwordx2 s[12:13], s[0:1], {KARG['wv']}
    s_load_dwordx2 s[14:15], s[0:1], {KARG['ws']}
    """)
    decode_wg(p, S_TB, S_CB, 'K1_END')
    tl_begin(p)
    st = Stamper(p, 0); st.stamp(True); st.stamp()
    p.I(f"""
    v_lshrrev_b32 v1, 6, v0
    v_and_b32 v0, 63, v0
    v_readfirstlane_b32 s{S_W}, v1
    """)
    srd(p, 16, 4, 2048*1024)
    srd(p, 20, 8, 512*1024)
    p.I(f"""
    s_cmp_eq_u32 s{S_CB}, 0
    s_cselect_b32 s24, s10, s12
    s_cselect_b32 s25, s11, s13
    s_and_b32 s25, s25, 0xffff
    s_mov_b32 s26, 16384
    s_mov_b32 s27, 0x00020000
    """)
    srd(p, 28, 14, WS_USED)
    p.I(f"""
    v_lshrrev_b32 v2, 3, v0          ; t
    v_and_b32 v3, 7, v0              ; p
    v_lshlrev_b32 v4, 10, v2
    v_lshl_add_u32 v4, v3, 4, v4     ; t*1024+p*16
    s_lshl_b32 s35, s{S_TB}, 6
    s_lshl_b32 s36, s{S_W}, 3
    s_add_u32 s35, s35, s36
    s_lshl_b32 s35, s35, 10          ; (64tb+8w)*1024
    """)
    for i in range(8):
        p.I(f"buffer_load_dwordx4 v[{X+4*i}:{X+4*i+3}], v4, s[16:19], s35 offen offset:{128*i}")
    p.I(f"""
    v_lshrrev_b32 v5, 1, v2
    v_and_b32 v5, 1, v5
    v_lshlrev_b32 v5, 2, v5
    v_xor_b32 v5, v5, v3
    v_lshlrev_b32 v5, 4, v5
    v_lshl_add_u32 v5, v2, 10, v5
    s_lshl_b32 s36, s{S_W}, 16       ; w*8*8192
    s_lshl_b32 s37, s{S_CB}, 7
    s_add_u32 s36, s36, s37          ; soffset
    s_lshl_b32 s37, s{S_W}, 13
    s_add_u32 s37, s37, {L_WQ}
    """)
    for t in range(8):
        p.I(f"""
        s_mov_b32 m0, s37
        buffer_load_dwordx4 v5, s[20:23], s36 offen lds
        s_add_u32 s36, s36, 8192
        s_add_u32 s37, s37, 1024
        """, tw=['dma'])
    p.I(f"""
    v_lshlrev_b32 v6, 4, v0          ; lane*16
    s_cmp_gt_u32 s{S_CB}, 1
    s_cbranch_scc1 K1_NOKV
    s_lshl_b32 s36, s{S_W}, 11
    s_add_u32 s37, s36, {L_WKV}
    s_mov_b32 m0, s37
    """)
    p.I("buffer_load_dwordx4 v6, s[24:27], s36 offen lds", tw=['dma'])
    p.I(f"""
    s_add_u32 s36, s36, 1024
    s_add_u32 s37, s37, 1024
    s_mov_b32 m0, s37
    """)
    p.I("buffer_load_dwordx4 v6, s[24:27], s36 offen lds", tw=['dma'])
    p.L('K1_NOKV')
    p.I("s_waitcnt vmcnt(8)") if DO_STAMP else None
    st.stamp()
    p.I(f"""
    s_mov_b32 s40, 0x3f803f80
    s_mov_b32 s41, 0x00003f80
    s_mov_b32 s42, 0x3f800000
    v_mov_b32 v8, 0
    v_mov_b32 v9, 0
    v_mov_b32 v10, 0
    v_mov_b32 v11, 0
    """)
    for r in range(32):
        a = 8 + (r & 1); b = 10 + (r & 1)
        p.I(f"v_dot2_f32_bf16 v{a}, v{X+r}, s40, v{a}")
        p.I(f"v_dot2_f32_bf16 v{b}, v{X+r}, v{X+r}, v{b}")
    p.I("""
    v_add_f32 v8, v8, v9
    v_add_f32 v10, v10, v11
    """)
    for mod in ('quad_perm:[1,0,3,2]', 'quad_perm:[2,3,0,1]', 'row_half_mirror'):
        p.I(f"v_add_f32_dpp v8, v8, v8 {mod} row_mask:0xf bank_mask:0xf")
        p.I(f"v_add_f32_dpp v10, v10, v10 {mod} row_mask:0xf bank_mask:0xf")
    p.I(f"""
    v_mul_f32 v8, 0x3b000000, v8
    v_mul_f32 v10, 0x3b000000, v10     ; E[x^2]
    v_fma_f32 v10, -v8, v8, v10        ; var
    v_max_f32 v10, 0, v10
    v_cvt_pk_bf16_f32 v9, v8, v10
    v_lshlrev_b32 v8, 16, v9           ; m_b
    v_and_b32 v10, 0xffff0000, v9      ; var_b
    v_add_f32 v10, 0x3727c5ac, v10     ; +1e-5
    v_cvt_pk_bf16_f32 v10, v10, v10
    v_lshlrev_b32 v10, 16, v10
    v_sqrt_f32 v10, v10
    v_cvt_pk_bf16_f32 v10, v10, v10
    v_lshlrev_b32 v10, 16, v10
    v_rcp_f32 v10, v10                 ; r
    v_sub_f32 v8, 0, v8                ; -m
    v_mov_b32 v11, v10
    """)
    for r in range(32):
        t = 48 + 4 * (r & 3)
        p.I(f"""
        v_dot2_f32_bf16 v{t}, v{X+r}, s41, v8
        v_dot2_f32_bf16 v{t+1}, v{X+r}, s42, v8
        """)
        if r >= 1:
            q = 48 + 4 * ((r - 1) & 3); rr = r - 1
            p.I(f"v_cvt_pk_bf16_f32 v{q+2}, v{q}, v{q+1}")
        if r >= 2:
            q = 48 + 4 * ((r - 2) & 3)
            p.I(f"""
            v_lshlrev_b32 v{q}, 16, v{q+2}
            v_and_b32 v{q+1}, 0xffff0000, v{q+2}
            """)
        if r >= 3:
            q = 48 + 4 * ((r - 3) & 3); rr = r - 3
            p.I(f"""
            v_pk_mul_f32 v[{q}:{q+1}], v[{q}:{q+1}], v[10:11]
            v_cvt_pk_bf16_f32 v{X+rr}, v{q}, v{q+1}
            """)
    for r in (32, 33, 34):
        if r - 1 < 32:
            q = 48 + 4 * ((r - 1) & 3); p.I(f"v_cvt_pk_bf16_f32 v{q+2}, v{q}, v{q+1}")
        if r - 2 < 32:
            q = 48 + 4 * ((r - 2) & 3)
            p.I(f"""
            v_lshlrev_b32 v{q}, 16, v{q+2}
            v_and_b32 v{q+1}, 0xffff0000, v{q+2}
            """)
        q = 48 + 4 * ((r - 3) & 3); rr = r - 3
        p.I(f"""
        v_pk_mul_f32 v[{q}:{q+1}], v[{q}:{q+1}], v[10:11]
        v_cvt_pk_bf16_f32 v{X+rr}, v{q}, v{q+1}
        """)
    p.I(f"""
    s_and_b32 s36, s{S_W}, 1
    s_lshl_b32 s36, s36, 7           ; (w&1)*128
    s_lshl_b32 s37, s{S_W}, 13       ; 8w*1024
    s_add_u32 s36, s36, s37
    v_xor_b32 v12, v2, v3            ; p^t
    v_lshlrev_b32 v12, 4, v12
    v_lshl_add_u32 v12, v2, 10, v12  ; t*1024 + (p^t)*16
    v_add_u32 v12, s36, v12
    v_xor_b32 v13, 128, v12
    """)
    for i in range(8):
        p.I(f"ds_write_b128 v{12 + (i & 1)}, v[{X+4*i}:{X+4*i+3}] offset:{(i >> 1) * 256}", tw=['xnw'])
    st.stamp()
    p.wait_tags('dma', 'xnw')
    p.I("s_barrier")
    st.stamp()
    p.I(f"""
    v_and_b32 v2, 31, v0             ; n'
    v_lshrrev_b32 v3, 5, v0          ; h2
    v_and_b32 v4, 15, v0             ; f = n'&15
    v_xor_b32 v4, v4, v3             ; h2^f
    v_lshlrev_b32 v4, 4, v4
    v_lshl_add_u32 v4, v2, 10, v4
    """)
    p.I(f"""
    s_and_b32 s36, s{S_W}, 1         ; tt
    s_lshr_b32 s37, s{S_W}, 1
    s_lshl_b32 s38, s{S_CB}, 2
    s_add_u32 s37, s37, s38          ; s
    s_and_b32 s38, s37, 7
    s_lshl_b32 s38, s38, 5           ; (s&7)*32
    v_xor_b32 v5, s38, v4
    s_lshr_b32 s38, s37, 3
    s_lshl_b32 s38, s38, 8           ; (s>>3)*256
    s_lshl_b32 s39, s36, 15          ; tt*32768
    s_add_u32 s38, s38, s39
    v_add_u32 v5, s38, v5
    ds_read_b128 v[56:59], v5
    s_lshl_b32 s38, s{S_TB}, 1
    s_add_u32 s38, s38, s36
    s_lshl_b32 s38, s38, 5
    s_add_u32 s38, s38, s37
    s_lshl_b32 s38, s38, 10
    s_add_u32 s38, s38, {XF}
    buffer_store_dwordx4 v[56:59], v6, s[28:31], s38 offen
    """)
    p.I(f"""
    s_cmp_lt_u32 s{S_W}, 4
    s_cbranch_scc1 K1_Q
    s_cmp_gt_u32 s{S_W}, 5
    s_cbranch_scc1 K1_END
    s_cmp_gt_u32 s{S_CB}, 1
    s_cbranch_scc1 K1_END
    """)
    def tr_geom():
        p.I(f"""
        v_lshrrev_b32 v7, 4, v0          ; g
        v_and_b32 v8, 1, v7
        v_bfe_u32 v9, v0, 2, 2           ; r
        v_and_b32 v10, 3, v0             ; cc
        """)
    ACC = 64; RING = 80
    DEPTH = 4
    def gemm(xaddr_base_reg, waddr_reg, wstep, w2off, swap):
        for sl in range(8):
            p.I(f"v_xor_b32 v{120+sl}, {sl*32}, v{xaddr_base_reg}")
        NS = DEPTH + 1
        def loads(s):
            sl = RING + 8 * (s % NS)
            p.I(f"ds_read_b64_tr_b16 v[{sl}:{sl+1}], v{waddr_reg} offset:{s*wstep}")
            p.I(f"ds_read_b64_tr_b16 v[{sl+2}:{sl+3}], v{waddr_reg} offset:{s*wstep+w2off}")
            p.I(f"ds_read_b128 v[{sl+4}:{sl+7}], v{120+(s&7)} offset:{(s>>3)*256}")
        for s in range(DEPTH): loads(s)
        for s in range(32):
            if s + DEPTH < 32: loads(s + DEPTH)
            sl = RING + 8 * (s % NS)
            a, b = (f"v[{sl}:{sl+3}]", f"v[{sl+4}:{sl+7}]")
            if swap: a, b = b, a
            c = "0" if s == 0 else f"v[{ACC}:{ACC+15}]"
            p.I(f"v_mfma_f32_32x32x16_bf16 v[{ACC}:{ACC+15}], {a}, {b}, {c}")
    tr_geom()
    p.I(f"""
    s_sub_u32 s36, s{S_W}, 4         ; tt
    s_lshl_b32 s37, s36, 15
    v_add_u32 v14, s37, v4
    v_lshlrev_b32 v15, 3, v3         ; 8*h2
    v_add_u32 v15, v15, v9           ; row = 8h2 + r
    v_lshlrev_b32 v15, 5, v15        ; *32B
    v_lshl_add_u32 v15, v10, 3, v15  ; + cc*8
    v_add_u32 v15, {L_WKV}, v15
    s_lshl_b32 s38, s{S_TB}, 1
    s_add_u32 s38, s38, s36
    s_lshl_b32 s38, s38, 11
    s_add_u32 s38, s38, {KVF}
    s_cmp_eq_u32 s{S_CB}, 1
    s_cbranch_scc1 K1_V
    """)
    gemm(14, 15, 512, 128, False)
    for i in range(4):
        p.I(f"v_cvt_pk_bf16_f32 v{56+i}, v{ACC+2*i}, v{ACC+2*i+1}")
    p.I(f"""
    buffer_store_dwordx4 v[56:59], v6, s[28:31], s38 offen
    s_endpgm
    """)
    p.L('K1_V')
    gemm(14, 15, 512, 128, True)
    for i in range(8):
        p.I(f"v_cvt_pk_bf16_f32 v{56+i}, v{ACC+2*i}, v{ACC+2*i+1}")
    p.I(f"""
    v_and_b32 v12, 15, v0
    v_lshlrev_b32 v12, 4, v12
    v_lshl_add_u32 v12, v3, 8, v12   ; h2*256 + dim*16
    s_mov_b32 exec_lo, 0xffff
    s_mov_b32 exec_hi, 0xffff
    buffer_store_dwordx4 v[56:59], v12, s[28:31], s38 offen offset:1024
    buffer_store_dwordx4 v[60:63], v12, s[28:31], s38 offen offset:1536
    s_endpgm
    """)
    p.L('K1_Q')
    tr_geom()
    p.I(f"""
    s_and_b32 s36, s{S_W}, 1         ; cu
    s_lshr_b32 s37, s{S_W}, 1        ; tt
    s_lshl_b32 s38, s37, 15
    v_add_u32 v14, s38, v4
    v_lshrrev_b32 v11, 1, v10
    v_lshl_add_u32 v11, v8, 1, v11
    s_lshl_b32 s38, s36, 2
    v_add_u32 v11, s38, v11          ; c
    v_lshrrev_b32 v12, 1, v9
    v_lshlrev_b32 v12, 2, v12        ; ((r>>1)&1)<<2   (r<4)
    v_xor_b32 v11, v11, v12          ; p
    v_lshlrev_b32 v11, 4, v11
    v_and_b32 v12, 1, v10
    v_lshl_add_u32 v11, v12, 3, v11  ; + (cc&1)*8
    v_lshlrev_b32 v15, 3, v3
    v_add_u32 v15, v15, v9           ; row=8h2+r
    v_lshl_add_u32 v15, v15, 7, v11
    v_add_u32 v15, {L_WQ}, v15
    """)
    gemm(14, 15, 2048, 512, False)
    p.I(f"s_mov_b32 s40, {hex(QSCALE)}")
    for i in range(16):
        p.I(f"v_mul_f32 v{ACC+i}, s40, v{ACC+i}")
    for i in range(8):
        p.I(f"v_cvt_pk_bf16_f32 v{56+i}, v{ACC+2*i}, v{ACC+2*i+1}")
    p.I(f"""
    s_lshl_b32 s38, s{S_TB}, 1
    s_add_u32 s38, s38, s37          ; tile
    s_lshl_b32 s38, s38, 5
    s_lshl_b32 s39, s{S_CB}, 2
    s_add_u32 s38, s38, s39
    s_lshl_b32 s39, s36, 1
    s_add_u32 s38, s38, s39          ; + head
    s_lshl_b32 s38, s38, 10
    s_add_u32 s38, s38, {QF}
    buffer_store_dwordx4 v[56:59], v6, s[28:31], s38 offen
    buffer_store_dwordx4 v[60:63], v6, s[28:31], s38 offen offset:1024
    """)
    st.stamp(); st.stamp(True); st.flush(S_W, 28)
    tl_end(p, 0, False)
    p.L('K1_END')
    p.I("s_endpgm")
    p.finalize()
    return p, 128, K1_LDS
```

```python
from common import *
L_XN = 0; L_W = 65536; IMG = 11264; UOFF = IMG + 128; SLOT = 22784; NSLOT = 3
K1B_LDS = L_W + NSLOT * SLOT
LOG2E = 0x3fb8aa3b
def silu_mul(p, G, U, T, n, sneg):
    for i in range(n): p.I(f"v_mul_f32 v{T+i}, s{sneg}, v{G+i}")
    for i in range(n): p.I(f"v_exp_f32 v{T+i}, v{T+i}")
    for i in range(n): p.I(f"v_mul_f32 v{G+i}, v{G+i}, v{U+i}")
    for i in range(n): p.I(f"v_add_f32 v{T+i}, 1.0, v{T+i}")
    for i in range(n): p.I(f"v_rcp_f32 v{T+i}, v{T+i}")
    for i in range(n): p.I(f"v_mul_f32 v{G+i}, v{G+i}, v{T+i}")
def build_k1b():
    p = Prog('k1b')
    S_W, S_TB, S_CB, S_U0, S_CNT = 32, 33, 34, 35, 36
    p.I(f"""
    s_load_dwordx4 s[8:11], s[0:1], {KARG['w1']}
    s_load_dwordx2 s[14:15], s[0:1], {KARG['ws']}
    """)
    decode_wg(p, S_TB, S_CB, 'K1B_END')
    tl_begin(p)
    st = Stamper(p, 2); st.stamp(True); st.stamp()
    p.I(f"""
    v_lshrrev_b32 v1, 6, v0
    v_and_b32 v0, 63, v0
    v_readfirstlane_b32 s{S_W}, v1
    v_lshlrev_b32 v1, 4, v0
    s_mul_i32 s{S_U0}, s{S_CB}, 11
    s_mov_b32 s{S_CNT}, 11
    s_cmp_lt_u32 s{S_CB}, 7
    s_cbranch_scc1 K1B_U0
    s_mov_b32 s{S_U0}, 76
    K1B_U0:
    s_cmp_lt_u32 s{S_CB}, 6
    s_cselect_b32 s{S_CNT}, 11, 10
    """)
    srd(p, 16, 8, 512 * 2752)
    srd(p, 20, 10, 512 * 2752)
    srd(p, 28, 14, WS_USED)
    p.I(f"""
    s_lshl_b32 s37, s{S_TB}, 16
    s_add_u32 s37, s37, {XF}
    s_lshl_b32 s38, s{S_W}, 13
    s_add_u32 s37, s37, s38
    """)
    for i in range(8):
        p.I(f"""
        s_mov_b32 m0, s38
        buffer_load_dwordx4 v1, s[28:31], s37 offen lds
        s_add_u32 s37, s37, 1024
        s_add_u32 s38, s38, 1024
        """, tw=['xn'])
    for q in range(3):
        sb = 40 + 4 * q
        p.I(f"""
        s_add_u32 s37, s{S_W}, {8*q}       ; j
        s_cmp_ge_u32 s37, 11
        s_cselect_b32 s{sb}, s20, s16
        s_cselect_b32 s{sb+1}, s21, s17
        s_mov_b32 s{sb+2}, s18
        s_mov_b32 s{sb+3}, s19
        s_cselect_b32 s38, 11, 0
        s_cselect_b32 s39, {UOFF}, 0
        s_sub_u32 s37, s37, s38            ; n
        s_lshl_b32 s38, s37, 10
        s_add_u32 s{52+q}, s39, s38
        s_lshl_b32 s37, s37, 6
        v_add_u32 v5, s37, v0              ; g = 64n + lane
        v_mul_u32_u24 v6, 2979, v5
        v_lshrrev_b32 v6, 16, v6           ; row
        v_mul_u32_u24 v7, 22, v6
        v_sub_u32 v5, v5, v7               ; c
        v_mul_u32_u24 v6, 2752, v6
        v_lshl_add_u32 v5, v5, 4, v6
        s_lshl_b32 s37, s{S_U0}, 5
        v_add_u32 v{2+q}, s37, v5
        """)
    S_KOFF = 55
    def issue_stage(slot_base_expr_sgpr):
        for q in range(3):
            sb = 40 + 4 * q
            if q == 2:
                p.I(f"s_cmp_ge_u32 s{S_W}, 6\ns_cbranch_scc1 K1B_SK{issue_stage.n}")
            p.I(f"s_add_u32 s37, s{slot_base_expr_sgpr}, s{52+q}\ns_mov_b32 m0, s37")
            p.I(f"buffer_load_dwordx4 v{2+q}, s[{sb}:{sb+3}], s{S_KOFF} offen lds", tw=['w'])
            if q == 2:
                p.L(f"K1B_SK{issue_stage.n}"); issue_stage.n += 1
        p.I(f"s_add_u32 s{S_KOFF}, s{S_KOFF}, {32*2752}")
    issue_stage.n = 0
    p.I(f"""
    v_bfe_u32 v8, v0, 4, 1
    v_lshrrev_b32 v9, 5, v0          ; h2
    v_bfe_u32 v10, v0, 2, 2          ; r
    v_and_b32 v11, 3, v0             ; cc
    v_lshl_add_u32 v10, v9, 3, v10   ; 8h2+r
    v_mul_u32_u24 v10, 352, v10
    v_lshl_add_u32 v10, v11, 3, v10
    v_mul_u32_u24 v8, {UOFF}, v8
    v_add_u32 v10, v10, v8
    s_lshr_b32 s37, s{S_W}, 1        ; g
    s_lshl_b32 s37, s37, 5
    s_add_u32 s37, s37, {L_W}
    v_add_u32 v10, s37, v10
    s_and_b32 s37, s{S_W}, 1
    s_lshl_b32 s37, s37, 15
    v_add_u32 v11, s37, v1
    s_mov_b32 s{S_KOFF}, 0
    s_mov_b32 s56, {L_W}
    s_mov_b32 s57, {L_W+SLOT}
    s_mov_b32 s58, {L_W+2*SLOT}
    """)
    ACC = 16
    AF = 64
    BF = 88
    issue_stage(56); issue_stage(57)
    st.stamp()
    for sg in range(16):
        slot = sg % 3
        p.I(f"s_waitcnt vmcnt({2 if sg < 15 else 0})")
        p.I("s_barrier")
        if sg + 2 < 16: issue_stage(56 + (sg + 2) % 3)
        for ks in range(2):
            s = 2 * sg + ks
            p.I(f"ds_read_b128 v[{BF+4*ks}:{BF+4*ks+3}], v11 offset:{s*1024}")
            for a in range(3):
                o = slot * SLOT + ks * 16 * 352 + a * 128
                r = AF + 4 * (3 * ks + a)
                p.I(f"ds_read_b64_tr_b16 v[{r}:{r+1}], v10 offset:{o}")
                p.I(f"ds_read_b64_tr_b16 v[{r+2}:{r+3}], v10 offset:{o+4*352}")
        for ks in range(2):
            for a in range(3):
                r = AF + 4 * (3 * ks + a)
                c = '0' if (sg == 0 and ks == 0) else f"v[{ACC+16*a}:{ACC+16*a+15}]"
                p.I(f"v_mfma_f32_32x32x16_bf16 v[{ACC+16*a}:{ACC+16*a+15}], v[{r}:{r+3}], v[{BF+4*ks}:{BF+4*ks+3}], {c}")
    st.stamp()
    p.I(f"""
    s_mov_b32 s60, 0xbfb8aa3b
    s_lshl_b32 s37, s{S_TB}, 1
    s_and_b32 s38, s{S_W}, 1
    s_add_u32 s37, s37, s38           ; tile
    s_mul_i32 s37, s37, 86
    s_add_u32 s37, s37, s{S_U0}
    s_lshr_b32 s38, s{S_W}, 1         ; g
    s_add_u32 s37, s37, s38
    s_lshl_b32 s37, s37, 10
    s_add_u32 s37, s37, {HF}
    """)
    for a in range(3):
        A = ACC + 16 * a
        if a == 2:
            p.I(f"s_add_u32 s39, s38, 8\ns_cmp_ge_u32 s39, s{S_CNT}\ns_cbranch_scc1 K1B_DONE")
        silu_mul(p, A, A + 8, 64, 8, 60)
        for i in range(4): p.I(f"v_cvt_pk_bf16_f32 v{72+i}, v{A+2*i}, v{A+2*i+1}")
        p.I(f"buffer_store_dwordx4 v[72:75], v1, s[28:31], s37 offen\ns_add_u32 s37, s37, 4096")
    p.L('K1B_DONE')
    st.stamp(); st.stamp(True); st.flush(S_W, 28)
    tl_end(p, 1, False)
    p.L('K1B_END')
    p.I("s_endpgm")
    p.finalize()
    return p, 128, K1B_LDS
```

```python
from common import *
K2_LDS = 131072
Q=4; KF0=8; VF0=16; P0=32; S0=48; O=80; C=96
def build_k2(force_fallback=False):
    p = Prog('k2')
    S_W, S_TB, S_CB = 32, 33, 34
    p.I(f"""
    s_load_dwordx2 s[14:15], s[0:1], {KARG['ws']}
    """)
    decode_wg(p, S_TB, S_CB, 'K2_END')
    tl_begin(p)
    st = Stamper(p, 1); st.stamp(True); st.stamp()
    p.I(f"""
    v_lshrrev_b32 v1, 6, v0
    v_and_b32 v0, 63, v0
    v_readfirstlane_b32 s{S_W}, v1
    v_lshlrev_b32 v1, 4, v0          ; lane*16
    """)
    srd(p, 28, 14, WS_USED)
    p.I(f"""
    s_lshl_b32 s36, s{S_W}, 10
    s_add_u32 s37, s36, {KVF}
    """)
    for i in range(16):
        p.I(f"""
        s_mov_b32 m0, s36
        buffer_load_dwordx4 v1, s[28:31], s37 offen lds
        s_add_u32 s36, s36, 8192
        s_add_u32 s37, s37, 8192
        """, tw=['dma'])
    p.I(f"""
    s_lshr_b32 s38, s{S_W}, 2        ; tt
    s_lshl_b32 s39, s{S_TB}, 1
    s_add_u32 s38, s38, s39          ; tile
    s_lshl_b32 s38, s38, 5
    s_lshl_b32 s39, s{S_CB}, 2
    s_add_u32 s38, s38, s39
    s_and_b32 s39, s{S_W}, 3
    s_add_u32 s38, s38, s39
    s_lshl_b32 s38, s38, 10
    s_add_u32 s39, s38, {QF}
    buffer_load_dwordx4 v[{Q}:{Q+3}], v1, s[28:31], s39 offen
    """)
    for i in range(16): p.I(f"v_mov_b32 v{VF0+i}, 0x3f803f80")
    p.I(f"""
    v_and_b32 v2, 15, v0
    v_lshrrev_b32 v3, 5, v0
    v_lshlrev_b32 v2, 4, v2
    v_lshl_add_u32 v2, v3, 8, v2
    s_mov_b32 s40, 0xffff
    s_mov_b32 s41, 0xffff
    s_mov_b32 s42, 0
    """)
    p.wait_tags('dma')
    p.I("s_barrier")
    st.stamp()
    def kread(t_off, slot, areg=1): p.I(f"ds_read_b128 v[{KF0+4*slot}:{KF0+4*slot+3}], v{areg} offset:{t_off}")
    def vread(t_off, slot, areg=2):
        p.I(f"""
        s_mov_b64 exec, s[40:41]
        ds_read_b128 v[{VF0+8*slot}:{VF0+8*slot+3}], v{areg} offset:{t_off+1024}
        ds_read_b128 v[{VF0+8*slot+4}:{VF0+8*slot+7}], v{areg} offset:{t_off+1536}
        s_mov_b64 exec, -1
        """)
    def smfma(slot, kslot, c): p.I(f"v_mfma_f32_32x32x16_bf16 v[{S0+16*slot}:{S0+16*slot+15}], v[{KF0+4*kslot}:{KF0+4*kslot+3}], v[{Q}:{Q+3}], {c}")
    CREG = f"v[{C}:{C+15}]"
    kread(0, 0); kread(2048, 1)
    smfma(0, 0, '0'); smfma(1, 1, '0')
    M = 3
    p.I(f"v_max3_f32 v{M}, v{S0}, v{S0+1}, v{S0+2}")
    for i in range(3, 31, 2): p.I(f"v_max3_f32 v{M}, v{M}, v{S0+i}, v{S0+i+1}")
    p.I(f"v_max_f32 v{M}, v{M}, v{S0+31}")
    p.I(f"""
    v_mov_b32 v112, v{M}
    v_permlane32_swap_b32 v{M}, v112
    v_max_f32 v{M}, v{M}, v112
    v_add_f32 v{M}, 0x42c80000, v{M}      ; +100
    """)
    if force_fallback:
        p.I(f"v_subrev_f32 v{M}, 0x43fa0000, v{M}")
    st.stamp()
    p.L('K2_MAIN')
    for i in range(16): p.I(f"v_sub_f32 v{C+i}, 0, v{M}")
    p.I("""
    v_mov_b32 v113, v1
    v_mov_b32 v114, v2
    """)
    KA, VA = 113, 114
    def pv(slot, first):
        c = '0' if first else f"v[{O}:{O+15}]"
        a = f"v_mfma_f32_32x32x16_bf16 v[{O}:{O+15}], v[{VF0+8*slot}:{VF0+8*slot+3}], v[{P0+8*slot}:{P0+8*slot+3}], {c}"
        b = f"v_mfma_f32_32x32x16_bf16 v[{O}:{O+15}], v[{VF0+8*slot+4}:{VF0+8*slot+7}], v[{P0+8*slot+4}:{P0+8*slot+7}], v[{O}:{O+15}]"
        return a, b
    def iteration(t, off_t, do_s=True, do_k=True, do_pv=True, first_pv=False):
        s = t & 1; o = 1 - s
        S = S0 + 16 * s; P = P0 + 8 * s
        e = [f"v_exp_f32 v{S+i}, v{S+i}" for i in range(16)]
        c = [f"v_cvt_pk_bf16_f32 v{P+i}, v{S+2*i}, v{S+2*i+1}" for i in range(8)]
        pa, pb = pv(o, first_pv)
        if do_s: smfma(o, o, CREG)
        for i in range(4): p.I(e[i])
        if do_k: kread(off_t + 4096, s, KA)
        p.I(e[4]); p.I(e[5]); p.I(c[0]); p.I(c[1])
        if do_pv: p.I(pa)
        p.I(e[6]); p.I(e[7]); p.I(e[8]); p.I(c[2]); p.I(e[9]); p.I(c[3])
        if do_pv: p.I(pb)
        vread(off_t, s, VA)
        p.I(e[10]); p.I(e[11]); p.I(e[12]); p.I(c[4]); p.I(e[13]); p.I(c[5]); p.I(e[14]); p.I(e[15]); p.I(c[6]); p.I(c[7])
    kread(0, 0, KA); kread(2048, 1, KA)
    smfma(0, 0, CREG)
    iteration(0, 0, do_pv=False)
    iteration(1, 2048, first_pv=True)
    p.I("s_mov_b32 s43, 15")
    p.L('K2_LOOP')
    for j in range(4): iteration(2 + j, (2 + j) * 2048)
    p.I(f"""
    v_add_u32 v{KA}, 8192, v{KA}
    v_add_u32 v{VA}, 8192, v{VA}
    s_sub_u32 s43, s43, 1
    s_cmp_lg_u32 s43, 0
    s_cbranch_scc1 K2_LOOP
    """)
    iteration(62, 2 * 2048, do_k=False)
    iteration(63, 3 * 2048, do_s=False, do_k=False)
    pa, pb = pv(1, False); p.I(pa); p.I(pb)
    st.stamp()
    p.I(f"""
    v_rcp_f32 v112, v{O+8}
    s_mov_b32 s44, 0x6c800000
    v_cmp_nlt_f32 vcc, v{O+8}, s44
    """)
    for i in range(8): p.I(f"v_mul_f32 v{S0+i}, v{O+i}, v112")
    p.I(f"v_mul_f32 v115, 0, v{S0}")
    for i in range(1, 8): p.I(f"v_fma_f32 v115, v{S0+i}, 0, v115")
    p.I(f"""
    v_cmp_u_f32 s[46:47], v115, v115
    s_or_b64 vcc, vcc, s[46:47]
    s_cmp_lg_u32 s42, 0
    s_cbranch_scc1 K2_STORE
    s_cbranch_vccz K2_STORE
    """)
    p.I(f"""
    s_mov_b32 s42, 1
    v_mov_b32 v{M}, 0xff800000
    v_mov_b32 v113, v1
    s_mov_b32 s43, 32
    """)
    p.L('K2_FB')
    kread(0, 0, 113); kread(2048, 1, 113)
    smfma(0, 0, '0'); smfma(1, 1, '0')
    for i in range(0, 32, 2): p.I(f"v_max3_f32 v{M}, v{M}, v{S0+i}, v{S0+i+1}")
    p.I(f"""
    v_add_u32 v113, 4096, v113
    s_sub_u32 s43, s43, 1
    s_cmp_lg_u32 s43, 0
    s_cbranch_scc1 K2_FB
    v_mov_b32 v112, v{M}
    v_permlane32_swap_b32 v{M}, v112
    v_max_f32 v{M}, v{M}, v112
    s_branch K2_MAIN
    """)
    p.L('K2_STORE')
    for i in range(4): p.I(f"v_cvt_pk_bf16_f32 v{P0+i}, v{S0+2*i}, v{S0+2*i+1}")
    p.I(f"""
    s_add_u32 s39, s38, {OF}
    buffer_store_dwordx4 v[{P0}:{P0+3}], v1, s[28:31], s39 offen
    """)
    st.stamp(); st.stamp(True); st.flush(S_W, 28)
    tl_end(p, 2, False)
    p.L('K2_END')
    p.I("s_endpgm")
    p.finalize()
    return p, 128, K2_LDS
```

```python
from common import *
from k1b import silu_mul
STG = 16384; NS = 3
K3_LDS = 65536
def build_k3(with_ffn2=True):
    p = Prog('k3')
    S_W, S_TB, S_CB = 32, 33, 34
    p.I(f"""
    s_load_dwordx2 s[4:5], s[0:1], {KARG['x']}
    s_load_dwordx2 s[6:7], s[0:1], {KARG['wo']}
    s_load_dwordx4 s[8:11], s[0:1], {KARG['w2']}
    s_load_dwordx2 s[14:15], s[0:1], {KARG['ws']}
    """)
    decode_wg(p, S_TB, S_CB, 'K3_END')
    st = Stamper(p, 3); st.stamp(True); st.stamp()
    p.I(f"""
    v_lshrrev_b32 v1, 6, v0
    v_and_b32 v0, 63, v0
    v_readfirstlane_b32 s{S_W}, v1
    v_lshlrev_b32 v1, 4, v0
    """)
    srd(p, 16, 4, 2048 * 1024)
    srd(p, 20, 6, 512 * 1024)
    srd(p, 24, 8, 1376 * 1024)
    srd(p, 28, 14, WS_USED)
    srd(p, 40, 10, 2048 * 1024)
    p.I(f"""
    v_lshrrev_b32 v2, 3, v0          ; row
    v_and_b32 v3, 7, v0
    v_bfe_u32 v4, v2, 1, 1
    v_lshlrev_b32 v4, 2, v4
    v_xor_b32 v3, v3, v4
    v_lshlrev_b32 v3, 4, v3
    v_lshl_add_u32 v2, v2, 10, v3
    s_lshl_b32 s36, s{S_W}, 13       ; 8w rows * 1024
    s_lshl_b32 s37, s{S_CB}, 7
    s_add_u32 s50, s36, s37
    s_lshl_b32 s51, s{S_W}, 10
    """)
    p.I(f"""
    s_lshr_b32 s36, s{S_W}, 2
    s_lshl_b32 s37, s{S_TB}, 1
    s_add_u32 s36, s36, s37          ; tile
    s_and_b32 s37, s{S_W}, 3         ; ks
    s_mul_i32 s52, s36, 86
    s_add_u32 s52, s52, s37
    s_lshl_b32 s52, s52, 10
    s_add_u32 s52, s52, {HF}
    s_lshl_b32 s53, s36, 5
    s_add_u32 s53, s53, s37
    s_lshl_b32 s53, s53, 10
    s_add_u32 s53, s53, {OF}
    s_add_u32 s54, s51, 8192
    """)
    stages = ([('h', i) for i in range(22)] if with_ffn2 else []) + [('o', i) for i in range(8)]
    def issue(k):
        kind, i = stages[k]; base = (k % NS) * STG
        wsrd = 's[24:27]' if kind == 'h' else 's[20:23]'
        p.I(f"s_add_u32 s36, s51, {base}\ns_mov_b32 m0, s36\ns_add_u32 s37, s50, {i*65536}")
        p.I(f"buffer_load_dwordx4 v2, {wsrd}, s37 offen lds")
        tb_ = 52 if kind == 'h' else 53
        p.I(f"s_add_u32 s36, s54, {base}\ns_mov_b32 m0, s36\ns_add_u32 s37, s{tb_}, {i*4096}")
        p.I(f"buffer_load_dwordx4 v1, s[28:31], s37 offen lds")
    p.I(f"""
    v_bfe_u32 v5, v0, 4, 1
    v_lshrrev_b32 v6, 5, v0          ; h2
    v_bfe_u32 v7, v0, 2, 2           ; r
    v_and_b32 v8, 3, v0              ; cc
    v_lshrrev_b32 v9, 1, v8
    v_lshl_add_u32 v9, v5, 1, v9
    s_and_b32 s36, s{S_W}, 1         ; ct
    s_lshl_b32 s36, s36, 2
    v_add_u32 v9, s36, v9            ; chunk c
    v_lshrrev_b32 v10, 1, v7
    v_lshlrev_b32 v10, 2, v10
    v_xor_b32 v9, v9, v10
    v_lshlrev_b32 v9, 4, v9
    v_and_b32 v10, 1, v8
    v_lshl_add_u32 v9, v10, 3, v9
    v_lshl_add_u32 v7, v6, 2, v7     ; 4h2+r
    v_lshl_add_u32 v9, v7, 7, v9     ; + row*128
    s_lshr_b32 s36, s{S_W}, 2        ; kh
    s_lshl_b32 s37, s36, 12
    v_add_u32 v9, s37, v9
    s_lshl_b32 s37, s36, 11          ; kh*2*1024
    s_bfe_u32 s38, s{S_W}, 0x10001   ; tt
    s_lshl_b32 s38, s38, 12          ; tt*4096
    s_add_u32 s37, s37, s38
    s_add_u32 s37, s37, 8192
    v_add_u32 v10, s37, v1
    """)
    ACCH = 16; ACCO = 32; FR = 48
    issue(0); issue(1)
    firsth = True; firsto = True
    for k, (kind, i) in enumerate(stages):
        p.I(f"s_waitcnt vmcnt({2 if k + 1 < len(stages) else 0})")
        p.I("s_barrier")
        if k + 2 < len(stages): issue(k + 2)
        base = (k % NS) * STG
        half_stage = (kind == 'h' and i == 21)
        if half_stage:
            p.I(f"s_cmp_ge_u32 s{S_W}, 4\ns_cbranch_scc1 K3_SKIPH")
        for ks in range(2):
            r = FR + 8 * ks
            p.I(f"ds_read_b64_tr_b16 v[{r}:{r+1}], v9 offset:{base + ks*2048}")
            p.I(f"ds_read_b64_tr_b16 v[{r+2}:{r+3}], v9 offset:{base + ks*2048 + 1024}")
            p.I(f"ds_read_b128 v[{r+4}:{r+7}], v10 offset:{base + ks*1024}")
        for ks in range(2):
            r = FR + 8 * ks
            acc = ACCH if kind == 'h' else ACCO
            first = (i == 0 and ks == 0)
            c = '0' if first else f"v[{acc}:{acc+15}]"
            p.I(f"v_mfma_f32_32x32x16_bf16 v[{acc}:{acc+15}], v[{r}:{r+3}], v[{r+4}:{r+7}], {c}")
        if half_stage: p.L('K3_SKIPH')
    st.stamp()
    p.I("s_barrier")
    p.I(f"""
    s_and_b32 s36, s{S_W}, 3
    s_lshl_b32 s36, s36, 13
    v_add_u32 v11, s36, v1
    s_cmp_lt_u32 s{S_W}, 4
    s_cbranch_scc1 K3_RED0
    """)
    for q in range(4):
        if with_ffn2: p.I(f"ds_write_b128 v11, v[{ACCH+4*q}:{ACCH+4*q+3}] offset:{q*1024}", tw=['red'])
        p.I(f"ds_write_b128 v11, v[{ACCO+4*q}:{ACCO+4*q+3}] offset:{4096+q*1024}", tw=['red'])
    p.wait_tags('red')
    p.I("s_barrier\ns_endpgm")
    p.L('K3_RED0')
    p.I(f"""
    v_and_b32 v12, 31, v0
    v_lshlrev_b32 v12, 10, v12
    v_lshl_add_u32 v12, v6, 3, v12   ; token*1024 + h2*8
    s_lshl_b32 s36, s{S_TB}, 6
    s_bfe_u32 s38, s{S_W}, 0x10001
    s_lshl_b32 s38, s38, 5
    s_add_u32 s36, s36, s38
    s_lshl_b32 s36, s36, 10
    s_lshl_b32 s37, s{S_CB}, 7
    s_add_u32 s36, s36, s37
    s_and_b32 s37, s{S_W}, 1
    s_lshl_b32 s37, s37, 6
    s_add_u32 s55, s36, s37
    """)
    XR = 80
    for q in range(4): p.I(f"buffer_load_dwordx2 v[{XR+2*q}:{XR+2*q+1}], v12, s[16:19], s55 offen offset:{16*q}")
    if not with_ffn2:
        p.I(f"""
        s_lshl_b32 s36, s{S_TB}, 1
        s_bfe_u32 s38, s{S_W}, 0x10001
        s_add_u32 s36, s36, s38
        s_lshl_b32 s36, s36, 4
        s_lshl_b32 s37, s{S_CB}, 1
        s_add_u32 s36, s36, s37
        s_and_b32 s37, s{S_W}, 1
        s_add_u32 s36, s36, s37
        s_lshl_b32 s36, s36, 11
        s_add_u32 s36, s36, {GF}
        v_lshlrev_b32 v13, 5, v0
        buffer_load_dwordx4 v[96:99], v13, s[28:31], s36 offen
        buffer_load_dwordx4 v[100:103], v13, s[28:31], s36 offen offset:16
        """)
    p.I("s_barrier")
    T = 48
    for q in range(4):
        if with_ffn2:
            p.I(f"ds_read_b128 v[{T+4*q}:{T+4*q+3}], v11 offset:{q*1024}")
        p.I(f"ds_read_b128 v[{T+16+4*q}:{T+16+4*q+3}], v11 offset:{4096+q*1024}")
    for i in range(16):
        if with_ffn2: p.I(f"v_add_f32 v{ACCH+i}, v{ACCH+i}, v{T+i}")
        p.I(f"v_add_f32 v{ACCO+i}, v{ACCO+i}, v{T+16+i}")
    if with_ffn2:
        p.I("s_mov_b32 s60, 0xbfb8aa3b")
        for i in range(16): p.I(f"v_mul_f32 v{T+i}, s60, v{ACCH+i}")
        for i in range(16): p.I(f"v_exp_f32 v{T+i}, v{T+i}")
        for i in range(16): p.I(f"v_add_f32 v{T+i}, 1.0, v{T+i}")
        for i in range(16): p.I(f"v_rcp_f32 v{T+i}, v{T+i}")
        for i in range(16): p.I(f"v_mul_f32 v{ACCH+i}, v{ACCH+i}, v{T+i}")
    else:
        for i in range(8):
            p.I(f"v_lshlrev_b32 v{ACCH+2*i}, 16, v{96+i}\nv_and_b32 v{ACCH+2*i+1}, 0xffff0000, v{96+i}")
    for q in range(4):
        for d in range(2):
            xr = XR + 2 * q + d
            i0 = 4 * q + 2 * d
            p.I(f"""
            v_lshlrev_b32 v{T}, 16, v{xr}
            v_and_b32 v{T+1}, 0xffff0000, v{xr}
            v_fma_f32 v{T}, v{ACCO+i0}, v{ACCH+i0}, v{T}
            v_fma_f32 v{T+1}, v{ACCO+i0+1}, v{ACCH+i0+1}, v{T+1}
            v_cvt_pk_bf16_f32 v{xr}, v{T}, v{T+1}
            """)
        p.I(f"buffer_store_dwordx2 v[{XR+2*q}:{XR+2*q+1}], v12, s[40:43], s55 offen offset:{16*q}")
    st.stamp(); st.stamp(True); st.flush(S_W, 28)
    p.L('K3_END')
    p.I("s_endpgm")
    p.finalize()
    return p, 128, K3_LDS
```

```python
import sys
from common import *
import k1, k2, k1b, k3
NAME = 'recurrent_scan__grouped_kv_mqa__glu_gated_swiglu__prompt'
HDR = open('cdna_kernels/%s.s.ref' % NAME).read().split('; Override launch geometry')[0]
def build(kernels, path):
    s = HDR
    for (label, prog, vgpr, lds, block) in kernels:
        s += f"; @launch kernel={label} grid=(256,1,1) block=({block},1,1) lds={lds}\n"
    s += '.amdgcn_target "amdgcn-amd-amdhsa--gfx950"\n.text\n'
    for (label, prog, vgpr, lds, block) in kernels:
        s += kernel_text(label, prog, vgpr)
    s += '.section .rodata,"a"\n'
    for (label, prog, vgpr, lds, block) in kernels:
        s += '.p2align 6\n' + descriptor(label, vgpr)
    open(path, 'w').write(s)
    for (label, prog, vgpr, lds, block) in kernels: print(label, prog.count())
if __name__ == '__main__':
    ks = []
    p, v, lds = k1.build_k1(); ks.append(('k1_kernel', p, v, lds, 512))
    p, v, lds = k1b.build_k1b(); ks.append(('k1b_kernel', p, v, lds, 512))
    p, v, lds = k2.build_k2('fb' in sys.argv); ks.append(('k2_kernel', p, v, lds, 512))
    p, v, lds = k3.build_k3(True); ks.append(('k3_kernel', p, v, lds, 512))
    out = 'cur.s'
    for a in sys.argv[1:]:
        if a.endswith('.s'): out = a
    build(ks, out)
```

```python
from common import *
from k1b import silu_mul
STG = 16384; NS = 3
K3_LDS = 65536
def build_k3(with_ffn2=True, perturb=None):
    p = Prog('k3')
    S_W, S_TB, S_CB = 32, 33, 34
    p.I(f"""
    s_load_dwordx2 s[4:5], s[0:1], {KARG['x']}
    s_load_dwordx2 s[6:7], s[0:1], {KARG['wo']}
    s_load_dwordx4 s[8:11], s[0:1], {KARG['w2']}
    s_load_dwordx2 s[14:15], s[0:1], {KARG['ws']}
    """)
    decode_wg(p, S_TB, S_CB, 'K3_END')
    tl_begin(p)
    st = Stamper(p, 3); st.stamp(True); st.stamp()
    p.I(f"""
    v_lshrrev_b32 v1, 6, v0
    v_and_b32 v0, 63, v0
    v_readfirstlane_b32 s{S_W}, v1
    v_lshlrev_b32 v1, 4, v0
    """)
    srd(p, 16, 4, 2048 * 1024)
    srd(p, 20, 6, 512 * 1024)
    srd(p, 24, 8, 1376 * 1024)
    srd(p, 28, 14, WS_USED)
    srd(p, 40, 10, 2048 * 1024)
    p.I(f"""
    v_lshrrev_b32 v2, 3, v0          ; row
    v_and_b32 v3, 7, v0
    v_bfe_u32 v4, v2, 1, 1
    v_lshlrev_b32 v4, 2, v4
    v_xor_b32 v3, v3, v4
    v_lshlrev_b32 v3, 4, v3
    v_lshl_add_u32 v2, v2, 10, v3
    s_lshl_b32 s36, s{S_W}, 13       ; 8w rows * 1024
    s_lshl_b32 s37, s{S_CB}, 7
    s_add_u32 s50, s36, s37
    s_lshl_b32 s51, s{S_W}, 10
    """)
    p.I(f"""
    s_lshr_b32 s36, s{S_W}, 2
    s_lshl_b32 s37, s{S_TB}, 1
    s_add_u32 s36, s36, s37          ; tile
    s_and_b32 s37, s{S_W}, 3         ; ks
    s_mul_i32 s52, s36, 86
    s_add_u32 s52, s52, s37
    s_lshl_b32 s52, s52, 10
    s_add_u32 s52, s52, {HF}
    s_lshl_b32 s53, s36, 5
    s_add_u32 s53, s53, s37
    s_lshl_b32 s53, s53, 10
    s_add_u32 s53, s53, {OF}
    s_add_u32 s54, s51, 8192
    """)
    stages = ([('h', i) for i in range(22)] if with_ffn2 else []) + [('o', i) for i in range(8)]
    def issue(k):
        kind, i = stages[k]; base = (k % NS) * STG
        wsrd = 's[24:27]' if kind == 'h' else 's[20:23]'
        p.I(f"s_add_u32 s36, s51, {base}\ns_mov_b32 m0, s36\ns_add_u32 s37, s50, {i*65536}")
        p.I(f"buffer_load_dwordx4 v2, {wsrd}, s37 offen lds")
        tb_ = 52 if kind == 'h' else 53
        p.I(f"s_add_u32 s36, s54, {base}\ns_mov_b32 m0, s36\ns_add_u32 s37, s{tb_}, {i*4096}")
        p.I(f"buffer_load_dwordx4 v1, s[28:31], s37 offen lds")
    p.I(f"""
    v_bfe_u32 v5, v0, 4, 1
    v_lshrrev_b32 v6, 5, v0          ; h2
    v_bfe_u32 v7, v0, 2, 2           ; r
    v_and_b32 v8, 3, v0              ; cc
    v_lshrrev_b32 v9, 1, v8
    v_lshl_add_u32 v9, v5, 1, v9
    s_and_b32 s36, s{S_W}, 1         ; ct
    s_lshl_b32 s36, s36, 2
    v_add_u32 v9, s36, v9            ; chunk c
    v_lshrrev_b32 v10, 1, v7
    v_lshlrev_b32 v10, 2, v10
    v_xor_b32 v9, v9, v10
    v_lshlrev_b32 v9, 4, v9
    v_and_b32 v10, 1, v8
    v_lshl_add_u32 v9, v10, 3, v9
    v_lshl_add_u32 v7, v6, 2, v7     ; 4h2+r
    v_lshl_add_u32 v9, v7, 7, v9     ; + row*128
    s_lshr_b32 s36, s{S_W}, 2        ; kh
    s_lshl_b32 s37, s36, 12
    v_add_u32 v9, s37, v9
    s_lshl_b32 s37, s36, 11          ; kh*2*1024
    s_bfe_u32 s38, s{S_W}, 0x10001   ; tt
    s_lshl_b32 s38, s38, 12          ; tt*4096
    s_add_u32 s37, s37, s38
    s_add_u32 s37, s37, 8192
    v_add_u32 v10, s37, v1
    """)
    ACCH = 16; ACCO = 32; FR = 48
    issue(0); issue(1)
    firsth = True; firsto = True
    for k, (kind, i) in enumerate(stages):
        p.I(f"s_waitcnt vmcnt({2 if k + 1 < len(stages) else 0})")
        p.I("s_barrier")
        if k + 2 < len(stages): issue(k + 2)
        base = (k % NS) * STG
        half_stage = (kind == 'h' and i == 21)
        if half_stage:
            p.I(f"s_cmp_ge_u32 s{S_W}, 4\ns_cbranch_scc1 K3_SKIPH")
        for ks in range(2):
            r = FR + 8 * ks
            p.I(f"ds_read_b64_tr_b16 v[{r}:{r+1}], v9 offset:{base + ks*2048}")
            p.I(f"ds_read_b64_tr_b16 v[{r+2}:{r+3}], v9 offset:{base + ks*2048 + 1024}")
            p.I(f"ds_read_b128 v[{r+4}:{r+7}], v10 offset:{base + ks*1024}")
        for ks in range(2):
            r = FR + 8 * ks
            acc = ACCH if kind == 'h' else ACCO
            first = (i == 0 and ks == 0)
            c = '0' if first else f"v[{acc}:{acc+15}]"
            p.I(f"v_mfma_f32_32x32x16_bf16 v[{acc}:{acc+15}], v[{r}:{r+3}], v[{r+4}:{r+7}], {c}")
        if half_stage: p.L('K3_SKIPH')
    st.stamp()
    p.I("s_barrier")
    p.I(f"""
    s_and_b32 s36, s{S_W}, 3
    s_lshl_b32 s36, s36, 13
    v_add_u32 v11, s36, v1
    s_cmp_lt_u32 s{S_W}, 4
    s_cbranch_scc1 K3_RED0
    """)
    for q in range(4):
        if with_ffn2: p.I(f"ds_write_b128 v11, v[{ACCH+4*q}:{ACCH+4*q+3}] offset:{q*1024}", tw=['red'])
        p.I(f"ds_write_b128 v11, v[{ACCO+4*q}:{ACCO+4*q+3}] offset:{4096+q*1024}", tw=['red'])
    p.wait_tags('red')
    p.I("s_barrier\ns_endpgm")
    p.L('K3_RED0')
    p.I(f"""
    v_and_b32 v12, 31, v0
    v_lshlrev_b32 v12, 10, v12
    v_lshl_add_u32 v12, v6, 3, v12   ; token*1024 + h2*8
    s_lshl_b32 s36, s{S_TB}, 6
    s_bfe_u32 s38, s{S_W}, 0x10001
    s_lshl_b32 s38, s38, 5
    s_add_u32 s36, s36, s38
    s_lshl_b32 s36, s36, 10
    s_lshl_b32 s37, s{S_CB}, 7
    s_add_u32 s36, s36, s37
    s_and_b32 s37, s{S_W}, 1
    s_lshl_b32 s37, s37, 6
    s_add_u32 s55, s36, s37
    """)
    XR = 80
    for q in range(4): p.I(f"buffer_load_dwordx2 v[{XR+2*q}:{XR+2*q+1}], v12, s[16:19], s55 offen offset:{16*q}")
    if not with_ffn2:
        p.I(f"""
        s_lshl_b32 s36, s{S_TB}, 1
        s_bfe_u32 s38, s{S_W}, 0x10001
        s_add_u32 s36, s36, s38
        s_lshl_b32 s36, s36, 4
        s_lshl_b32 s37, s{S_CB}, 1
        s_add_u32 s36, s36, s37
        s_and_b32 s37, s{S_W}, 1
        s_add_u32 s36, s36, s37
        s_lshl_b32 s36, s36, 11
        s_add_u32 s36, s36, {GF}
        v_lshlrev_b32 v13, 5, v0
        buffer_load_dwordx4 v[96:99], v13, s[28:31], s36 offen
        buffer_load_dwordx4 v[100:103], v13, s[28:31], s36 offen offset:16
        """)
    p.I("s_barrier")
    T = 48
    for q in range(4):
        if with_ffn2:
            p.I(f"ds_read_b128 v[{T+4*q}:{T+4*q+3}], v11 offset:{q*1024}")
        p.I(f"ds_read_b128 v[{T+16+4*q}:{T+16+4*q+3}], v11 offset:{4096+q*1024}")
    for i in range(16):
        if with_ffn2: p.I(f"v_add_f32 v{ACCH+i}, v{ACCH+i}, v{T+i}")
        p.I(f"v_add_f32 v{ACCO+i}, v{ACCO+i}, v{T+16+i}")
    if with_ffn2:
        p.I("s_mov_b32 s60, 0xbfb8aa3b")
        for i in range(16): p.I(f"v_mul_f32 v{T+i}, s60, v{ACCH+i}")
        for i in range(16): p.I(f"v_exp_f32 v{T+i}, v{T+i}")
        for i in range(16): p.I(f"v_add_f32 v{T+i}, 1.0, v{T+i}")
        for i in range(16): p.I(f"v_rcp_f32 v{T+i}, v{T+i}")
        for i in range(16): p.I(f"v_mul_f32 v{ACCH+i}, v{ACCH+i}, v{T+i}")
    else:
        for i in range(8):
            p.I(f"v_lshlrev_b32 v{ACCH+2*i}, 16, v{96+i}\nv_and_b32 v{ACCH+2*i+1}, 0xffff0000, v{96+i}")
    for q in range(4):
        for d in range(2):
            xr = XR + 2 * q + d
            i0 = 4 * q + 2 * d
            p.I(f"""
            v_lshlrev_b32 v{T}, 16, v{xr}
            v_and_b32 v{T+1}, 0xffff0000, v{xr}
            v_fma_f32 v{T}, v{ACCO+i0}, v{ACCH+i0}, v{T}
            v_fma_f32 v{T+1}, v{ACCO+i0+1}, v{ACCH+i0+1}, v{T+1}
            """)
            if perturb and q == 0 and d == 0: p.I(f"v_add_f32 v{T}, {perturb}, v{T}")
            p.I(f"v_cvt_pk_bf16_f32 v{xr}, v{T}, v{T+1}")
        p.I(f"buffer_store_dwordx2 v[{XR+2*q}:{XR+2*q+1}], v12, s[40:43], s55 offen offset:{16*q}")
    st.stamp(); st.stamp(True); st.flush(S_W, 28)
    tl_end(p, 3, True)
    p.L('K3_END')
    p.I("s_endpgm")
    p.finalize()
    return p, 128, K3_LDS
```

```python
from build import *
def mk(seq, path):
    d = {}
    d['k1'] = ('k1_kernel',) + k1.build_k1() + (512,)
    d['k1b'] = ('k1b_kernel',) + k1b.build_k1b() + (512,)
    d['k2'] = ('k2_kernel',) + k2.build_k2(False) + (512,)
    d['k3'] = ('k3_kernel',) + k3.build_k3(True) + (512,)
    s = HDR
    for n in seq:
        label, prog, vgpr, lds, block = d[n]
        s += f"; @launch kernel={label} grid=(256,1,1) block=({block},1,1) lds={lds}\n"
    s += '.amdgcn_target "amdgcn-amd-amdhsa--gfx950"\n.text\n'
    for n in d:
        label, prog, vgpr, lds, block = d[n]; s += kernel_text(label, prog, vgpr)
    s += '.section .rodata,"a"\n'
    for n in d:
        label, prog, vgpr, lds, block = d[n]; s += '.p2align 6\n' + descriptor(label, vgpr)
    open(path, 'w').write(s)
mk(['k1','k1b','k2','k3'], 'v_base.s')
mk(['k1','k1b','k2','k2','k3'], 'v_k2x2.s')
mk(['k1','k1','k1b','k2','k3'], 'v_k1x2.s')
mk(['k1','k1b','k1b','k2','k3'], 'v_k1bx2.s')
mk(['k1','k1b','k2','k3','k3'], 'v_k3x2.s')
mk(['k1','k1b','k2','k3','k1','k1b','k2','k3'], 'v_allx2.s')
```

```python
from asmlib import *
XF = 0x000000
QF = 0x200000
KVF= 0x400000
HF = 0x500000
OF = 0xB00000
GF = 0xD00000
WS_USED = 0xF00000
KARG = dict(x=0, wq=8, wk=16, wv=24, wo=32, bx=40, w1=48, w3=56, w2=64, out=72, dbg=80, ws=88)

def srd(p, dst, ptr, nbytes):
    p.I(f"""
    s_mov_b32 s{dst}, s{ptr}
    s_and_b32 s{dst+1}, s{ptr+1}, 0xffff
    s_mov_b32 s{dst+2}, {hex(nbytes)}
    s_mov_b32 s{dst+3}, 0x00020000
    """)

def decode_wg(p, s_tb, s_cb, endlabel):
    p.I(f"""
    s_cmp_ge_u32 s2, 256
    s_cbranch_scc1 {endlabel}
    s_and_b32 s{s_tb}, s2, 7
    s_lshr_b32 s{s_cb}, s2, 3
    s_and_b32 s{s_cb}, s{s_cb}, 3
    s_lshl_b32 s{s_cb}, s{s_cb}, 3
    s_add_u32 s{s_tb}, s{s_tb}, s{s_cb}
    s_lshr_b32 s{s_cb}, s2, 5
    """)

STAMP = 0xF00000
import os
DO_STAMP = os.environ.get('STAMP', '0') == '1'
ST_BASE = 84
class Stamper:
    def __init__(self, p, kidx): self.p = p; self.k = kidx; self.n = 0
    def stamp(self, real=False):
        if not DO_STAMP: return
        assert self.n < 14
        op = 's_memrealtime' if real else 's_memtime'
        self.p.I(f"{op} s[100:101]\ns_waitcnt lgkmcnt(0)\ns_mov_b32 s{ST_BASE+self.n}, s100")
        self.n += 1
    def flush(self, s_w, srd_base, lane_reg_is_lane='v0', tmp=(120, 121)):
        if not DO_STAMP: return
        p = self.p; a, b = tmp
        p.I(f"""
        s_lshl_b32 s100, s2, 3
        s_add_u32 s100, s100, s{s_w}
        s_lshl_b32 s100, s100, 6
        s_add_u32 s100, s100, {STAMP + self.k * 131072}
        v_mov_b32 v{a}, 0
        """)
        for i in range(self.n):
            p.I(f"v_mov_b32 v{b}, s{ST_BASE+i}\nbuffer_store_dword v{b}, v{a}, s[{srd_base}:{srd_base+3}], s100 offen offset:{4*i}")
WS_USED = 0x1000000

DO_TL = os.environ.get('TL', '0') == '1'
def tl_begin(p):
    if not DO_TL: return
    p.I("s_memrealtime s[96:97]\ns_load_dwordx2 s[98:99], s[0:1], 80\ns_waitcnt lgkmcnt(0)")
def tl_end(p, idx, launch_pos):
    if not DO_TL: return
    p.I(f"""
    s_memrealtime s[94:95]
    s_sub_u32 s98, s98, {512*launch_pos}
    s_subb_u32 s99, s99, 0
    s_waitcnt lgkmcnt(0)
    s_not_b32 s96, s96
    v_mov_b32 v2, 0
    v_mov_b32 v3, s96
    v_mov_b32 v4, s94
    s_mov_b64 exec, 1
    global_atomic_umax v2, v3, s[98:99] offset:{8*idx}
    global_atomic_umax v2, v4, s[98:99] offset:{8*idx+4}
    """)
```

```python
from asmlib import *
XF = 0x000000
QF = 0x200000
KVF= 0x400000
HF = 0x500000
OF = 0xB00000
GF = 0xD00000
WS_USED = 0xF00000
KARG = dict(x=0, wq=8, wk=16, wv=24, wo=32, bx=40, w1=48, w3=56, w2=64, out=72, dbg=80, ws=88)

def srd(p, dst, ptr, nbytes):
    p.I(f"""
    s_mov_b32 s{dst}, s{ptr}
    s_and_b32 s{dst+1}, s{ptr+1}, 0xffff
    s_mov_b32 s{dst+2}, {hex(nbytes)}
    s_mov_b32 s{dst+3}, 0x00020000
    """)

def decode_wg(p, s_tb, s_cb, endlabel):
    p.I(f"""
    s_cmp_ge_u32 s2, 256
    s_cbranch_scc1 {endlabel}
    s_and_b32 s{s_tb}, s2, 7
    s_lshr_b32 s{s_cb}, s2, 3
    s_and_b32 s{s_cb}, s{s_cb}, 3
    s_lshl_b32 s{s_cb}, s{s_cb}, 3
    s_add_u32 s{s_tb}, s{s_tb}, s{s_cb}
    s_lshr_b32 s{s_cb}, s2, 5
    """)

STAMP = 0xF00000
import os
DO_STAMP = os.environ.get('STAMP', '0') == '1'
ST_BASE = 84
class Stamper:
    def __init__(self, p, kidx): self.p = p; self.k = kidx; self.n = 0
    def stamp(self, real=False):
        if not DO_STAMP: return
        assert self.n < 14
        op = 's_memrealtime' if real else 's_memtime'
        self.p.I(f"{op} s[100:101]\ns_waitcnt lgkmcnt(0)\ns_mov_b32 s{ST_BASE+self.n}, s100")
        self.n += 1
    def flush(self, s_w, srd_base, lane_reg_is_lane='v0', tmp=(120, 121)):
        if not DO_STAMP: return
        p = self.p; a, b = tmp
        p.I(f"""
        s_lshl_b32 s100, s2, 3
        s_add_u32 s100, s100, s{s_w}
        s_lshl_b32 s100, s100, 6
        s_add_u32 s100, s100, {STAMP + self.k * 131072}
        v_mov_b32 v{a}, 0
        """)
        for i in range(self.n):
            p.I(f"v_mov_b32 v{b}, s{ST_BASE+i}\nbuffer_store_dword v{b}, v{a}, s[{srd_base}:{srd_base+3}], s100 offen offset:{4*i}")
WS_USED = 0x1000000

DO_TL = os.environ.get('TL', '0') == '1'
def tl_begin(p):
    if not DO_TL: return
    p.I("s_memrealtime s[96:97]\ns_load_dwordx2 s[98:99], s[0:1], 80\ns_waitcnt lgkmcnt(0)")
def tl_end(p, idx, launch_pos):
    if not DO_TL: return
    p.I(f"""
    s_memrealtime s[94:95]
    s_waitcnt lgkmcnt(0)
    s_and_b32 s93, s2, 0xff
    s_cmp_eq_u32 s93, 0
    s_cbranch_scc0 TL_SKIP{idx}
    s_cmp_eq_u32 s32, 0
    s_cbranch_scc0 TL_SKIP{idx}
    v_mov_b32 v2, 0
    v_mov_b32 v3, s96
    v_mov_b32 v4, s94
    s_mov_b64 exec, 1
    global_store_dword v2, v3, s[98:99] offset:{8*idx}
    global_store_dword v2, v4, s[98:99] offset:{8*idx+4}
    s_sub_u32 s98, s98, {512*launch_pos}
    s_subb_u32 s99, s99, 0
    global_store_dword v2, v3, s[98:99] offset:{8*idx+32}
    global_store_dword v2, v4, s[98:99] offset:{8*idx+36}
    TL_SKIP{idx}:
    """)
```

```python
from asmlib import *
XF = 0x000000
QF = 0x200000
KVF= 0x400000
HF = 0x500000
OF = 0xB00000
GF = 0xD00000
WS_USED = 0xF00000
KARG = dict(x=0, wq=8, wk=16, wv=24, wo=32, bx=40, w1=48, w3=56, w2=64, out=72, dbg=80, ws=88)

def srd(p, dst, ptr, nbytes):
    p.I(f"""
    s_mov_b32 s{dst}, s{ptr}
    s_and_b32 s{dst+1}, s{ptr+1}, 0xffff
    s_mov_b32 s{dst+2}, {hex(nbytes)}
    s_mov_b32 s{dst+3}, 0x00020000
    """)

def decode_wg(p, s_tb, s_cb, endlabel):
    p.I(f"""
    s_cmp_ge_u32 s2, 256
    s_cbranch_scc1 {endlabel}
    s_and_b32 s{s_tb}, s2, 7
    s_lshr_b32 s{s_cb}, s2, 3
    s_and_b32 s{s_cb}, s{s_cb}, 3
    s_lshl_b32 s{s_cb}, s{s_cb}, 3
    s_add_u32 s{s_tb}, s{s_tb}, s{s_cb}
    s_lshr_b32 s{s_cb}, s2, 5
    """)

STAMP = 0xF00000
import os
DO_STAMP = os.environ.get('STAMP', '0') == '1'
ST_BASE = 84
class Stamper:
    def __init__(self, p, kidx): self.p = p; self.k = kidx; self.n = 0
    def stamp(self, real=False):
        if not DO_STAMP: return
        assert self.n < 14
        op = 's_memrealtime' if real else 's_memtime'
        self.p.I(f"{op} s[100:101]\ns_waitcnt lgkmcnt(0)\ns_mov_b32 s{ST_BASE+self.n}, s100")
        self.n += 1
    def flush(self, s_w, srd_base, lane_reg_is_lane='v0', tmp=(120, 121)):
        if not DO_STAMP: return
        p = self.p; a, b = tmp
        p.I(f"""
        s_lshl_b32 s100, s2, 3
        s_add_u32 s100, s100, s{s_w}
        s_lshl_b32 s100, s100, 6
        s_add_u32 s100, s100, {STAMP + self.k * 131072}
        v_mov_b32 v{a}, 0
        """)
        for i in range(self.n):
            p.I(f"v_mov_b32 v{b}, s{ST_BASE+i}\nbuffer_store_dword v{b}, v{a}, s[{srd_base}:{srd_base+3}], s100 offen offset:{4*i}")
WS_USED = 0x1000000

DO_TL = os.environ.get('TL', '0') == '1'
TLBUF = 0xFF0000
def tl_begin(p):
    if not DO_TL: return
    p.I("s_memrealtime s[96:97]\ns_load_dwordx2 s[98:99], s[0:1], 80\ns_load_dwordx2 s[90:91], s[0:1], 88\ns_waitcnt lgkmcnt(0)")
def tl_end(p, idx, last):
    if not DO_TL: return
    p.I(f"""
    s_memrealtime s[94:95]
    s_waitcnt lgkmcnt(0)
    s_cmp_eq_u32 s32, 0
    s_cbranch_scc0 TL_SKIP{idx}
    s_cmp_eq_u32 s2, 0
    s_cbranch_scc0 TL_SKIP{idx}
    v_mov_b32 v2, {TLBUF}
    v_mov_b32 v3, s96
    v_mov_b32 v4, s94
    s_mov_b64 exec, 1
    global_store_dword v2, v3, s[90:91] offset:{8*idx}
    global_store_dword v2, v4, s[90:91] offset:{8*idx+4}
    """)
    if last:
        p.I(f"""
        s_waitcnt vmcnt(0)
        s_mov_b64 exec, 0xffff
        v_mbcnt_lo_u32_b32 v5, -1, 0
        v_lshlrev_b32 v5, 2, v5
        v_add_u32 v6, {TLBUF}, v5
        global_load_dword v7, v6, s[90:91] sc0 sc1
        s_waitcnt vmcnt(0)
        global_store_dword v5, v7, s[98:99]
        """)
    p.L(f"TL_SKIP{idx}")
```

```python
from build import *
def empty(name):
    p = Prog(name); p.I("s_endpgm"); return p
def mk(seq, path):
    d = {}
    d['k1'] = ('k1_kernel',) + k1.build_k1() + (512,)
    d['k1b'] = ('k1b_kernel',) + k1b.build_k1b() + (512,)
    d['k2'] = ('k2_kernel',) + k2.build_k2(False) + (512,)
    d['k3'] = ('k3_kernel',) + k3.build_k3(True) + (512,)
    d['e'] = ('e_kernel', empty('e'), 8, 0, 64)
    s = HDR
    for n in seq:
        label, prog, vgpr, lds, block = d[n]
        s += f"; @launch kernel={label} grid=(256,1,1) block=({block},1,1) lds={lds}\n"
    s += '.amdgcn_target "amdgcn-amd-amdhsa--gfx950"\n.text\n'
    for n in d:
        label, prog, vgpr, lds, block = d[n]; s += kernel_text(label, prog, vgpr)
    s += '.section .rodata,"a"\n'
    for n in d:
        label, prog, vgpr, lds, block = d[n]; s += '.p2align 6\n' + descriptor(label, vgpr)
    open(path, 'w').write(s)
mk(['k1','k1b','k2','k3'], 'w_base.s')
mk(['e','e','e','e','k1','k1b','k2','k3'], 'w_e4first.s')
mk(['e','k1','k1b','k2','k3'], 'w_e1first.s')
mk(['k1','e','e','e','e','k1b','k2','k3'], 'w_e4mid.s')
mk(['k1','k1b','k2','k3','e','e','e','e'], 'w_e4last.s')
```
